```python
import torch

def _softmax(x, axis=-1):
    return torch.softmax(x, dim=axis)
def _gelu(x):
    return torch.nn.functional.gelu(x, approximate="tanh")
def _silu(x):
    return torch.nn.functional.silu(x)
def _sigmoid(x):
    return torch.sigmoid(x)
def _layernorm(x, axis=-1, eps=1e-5):
    m = x.mean(dim=axis, keepdim=True)
    v = x.var(dim=axis, keepdim=True, unbiased=False)
    return (x - m) / torch.sqrt(v + eps)
def _scatter_add(tgt, idx, src, axis=0):
    return tgt.clone().index_add_(axis, idx, src)
def _segment_sum(src, seg, n):
    out = torch.zeros((n,) + src.shape[1:], dtype=src.dtype)
    return out.index_add_(0, seg, src)
def _pad(x, pw):
    flat = tuple(v for pair in reversed(pw) for v in pair)
    return torch.nn.functional.pad(x, flat)

kernel_name = 'recurrent_scan__gqa_block_cached__mixer_channel_mlp__decode'

def setup_inputs():

    _w = (lambda a: (lambda t: t.to(torch.bfloat16) if t.is_floating_point() else t)(torch.as_tensor(a)))
    def _A_setup():
        B, Sq, D = 1, 1, 512
        Hq, Hkv, Sk, Dh = 32, 32, 8192, 128
        assert Hq % Hkv == 0, (Hq, Hkv)
        return {
            "x": _w((lambda *s: torch.randn(*s, dtype=torch.bfloat16) * 0.1)(B, Sq, D)),
            "k_cache": _w((lambda *s: torch.randn(*s, dtype=torch.bfloat16) * 0.8)(B, Hkv, Sk, Dh)),
            "v_cache": _w((lambda *s: torch.randn(*s, dtype=torch.bfloat16) * 3.2)(B, Hkv, Sk, Dh)),
            "wq": _w((lambda *s: torch.randn(*s, dtype=torch.bfloat16) * 0.8)(D, Hq * Dh) * (D ** -0.5)),
            "wo": _w((lambda *s: torch.randn(*s, dtype=torch.bfloat16) * 3.2)(Hq * Dh, D) * ((Hq * Dh) ** -0.5)),
        }
    _A_in = _A_setup()

    def _B_setup():
        B, S, D, F = 1, 1, 512, 1376
        return {
            "x": _w((lambda *s: torch.randn(*s, dtype=torch.bfloat16) * 0.1)(B, S, D)),
            "w1": _w((lambda *s: torch.randn(*s, dtype=torch.bfloat16) * 3.2)(D, F) * (D ** -0.5)),
            "b1": _w((lambda *s: torch.randn(*s, dtype=torch.bfloat16) * 3.2)(F)),
            "w2": _w((lambda *s: torch.randn(*s, dtype=torch.bfloat16) * 3.2)(F, D) * (F ** -0.5)),
            "b2": _w((lambda *s: torch.randn(*s, dtype=torch.bfloat16) * 3.2)(D)),
        }
    _B_in = _B_setup()

    return {
        "A_x": _A_in["x"],
        "A_k_cache": _A_in["k_cache"],
        "A_v_cache": _A_in["v_cache"],
        "A_wq": _A_in["wq"],
        "A_wo": _A_in["wo"],
        "B_x": _B_in["x"],
        "B_w1": _B_in["w1"],
        "B_b1": _B_in["b1"],
        "B_w2": _B_in["w2"],
        "B_b2": _B_in["b2"],
    }

def reference(A_x, A_k_cache, A_v_cache, A_wq, A_wo, B_x, B_w1, B_b1, B_w2, B_b2):
    def _A_ref(x, k_cache, v_cache, wq, wo):
        B, Sq, D = x.shape
        Hq, Dh = 32, 128
        Hkv = k_cache.shape[1]
        rep = Hq // Hkv
        q = (lambda x, *d: x.permute(*d))((x @ wq).reshape(B, Sq, Hq, Dh), 0, 2, 1, 3)
        k = (lambda x, n, axis: torch.repeat_interleave(x, n, dim=axis))(k_cache, rep, axis=1)
        v = (lambda x, n, axis: torch.repeat_interleave(x, n, dim=axis))(v_cache, rep, axis=1)
        scores = torch.einsum("bhqd,bhkd->bhqk", q, k) * (Dh ** -0.5)
        p = _softmax(scores, axis=-1)
        o = torch.einsum("bhqk,bhkd->bhqd", p, v)
        return (lambda x, *d: x.permute(*d))(o, 0, 2, 1, 3).reshape(B, Sq, Hq * Dh) @ wo

    def _B_ref(x, w1, b1, w2, b2):
        y = _layernorm(x, axis=-1)
        h = _gelu(torch.einsum("bsd,df->bsf", y, w1) + b1)
        return torch.einsum("bsf,fd->bsd", h, w2) + b2

    x = A_x
    xn = _layernorm(x, axis=-1)
    s = _A_ref(xn, A_k_cache, A_v_cache, A_wq, A_wo)
    g = _silu(_B_ref(xn, B_w1, B_b1, B_w2, B_b2))
    return x + s * g
```

```python
KN = "recurrent_scan__gqa_block_cached__mixer_channel_mlp__decode"
HEADER_COMMENT = """; Kernarg layout (104 bytes, ptrs only, base s[0:1]):
"""
class Asm:
    def __init__(self):
        self.l = []
    def __call__(self, s=""):
        for x in s.split("\n"):
            self.l.append("    " + x.strip() if x.strip() and not x.strip().endswith(":") else x.strip())
    def label(self, s): self.l.append(s + ":")
    def text(self): return "\n".join(self.l) + "\n"

def kernel_begin(a, name):
    a.l.append(".globl %s" % name)
    a.l.append(".p2align 8")
    a.l.append(".type %s,@function" % name)
    a.l.append("%s:" % name)

def kd(name, vgpr=256, sgpr=102, accum=None, extra=""):
    if accum is None: accum = min(256, (vgpr + 3) // 4 * 4)
    return """.amdhsa_kernel %s
  .amdhsa_next_free_vgpr %d
  .amdhsa_next_free_sgpr %d
  .amdhsa_accum_offset %d
  .amdhsa_group_segment_fixed_size 0
  .amdhsa_kernarg_size 104
  .amdhsa_user_sgpr_count 2
  .amdhsa_user_sgpr_kernarg_segment_ptr 1
  .amdhsa_system_sgpr_workgroup_id_x 1
  .amdhsa_float_denorm_mode_32 3
%s.end_amdhsa_kernel
""" % (name, vgpr, sgpr, accum, extra)

def file_text(launch_lines, body, kds):
    return HEADER_COMMENT + "\n".join(launch_lines) + "\n" + '.amdgcn_target "amdgcn-amd-amdhsa--gfx950"\n.text\n' + body + '.section .rodata,"a"\n.p2align 6\n' + "\n.p2align 6\n".join(kds)

def srd(a, d, base, nbytes):
    a("s_mov_b32 s%d, s%d" % (d, base))
    a("s_and_b32 s%d, s%d, 0xffff" % (d + 1, base + 1))
    a("s_mov_b32 s%d, 0x%x" % (d + 2, nbytes))
    a("s_mov_b32 s%d, 0x20000" % (d + 3))
```

```python
import sys, copy
from asmlib import *
import hazard

NAME = KN + "_kernel"
REC = 2176
MO_OFF = 0x100000
STAMP_OFF = 0x8000000
L_QP, L_HP, L_ML, L_REDM, L_REDY, L_OP, L_YP = 0, 4608, 4864, 4928, 5184, 5632, 10240
L_MOP = L_YP
LDS_SIZE = 26624
OPS = 136
M = [8, 9, 10, 11]; Q = [12, 13, 14, 15]; BS = [16, 20]; D0, D1 = 24, 28; S0 = 32; P0 = 40; R0 = 44
XN = 46; Y2 = 47; W1 = 48; W2 = 52; T = 56; WQ = 64; SL = 128
FW = 46
sK, sV, sWQ, sWO, sW1, sW2, sY, sMO = 32, 36, 40, 44, 48, 52, 56, 60
s_xcd, s_slot, s_head, s_j, s_p, s_u, s_valid, s_kvoff, s_pY, s_w, s_a, s_b, s_c, s_d, s_so, s_b1, s_uoff, s_cs, s_cnt = range(64, 83)
s_ST = 84
DPPALL = "row_mask:0xf bank_mask:0xf"

def r4(b): return "v[%d:%d]" % (b, b + 3)
def r2(b): return "v[%d:%d]" % (b, b + 1)

class Gen:
    def __init__(self, P):
        self.P = P
        self.a = Asm()
        self.n = 0; self.done = 0; self.idx = {}
        self.uid = 0
        self.hist = {"s": [], "q": []}
    def clone_into(self):
        g = Gen(self.P); g.n = self.n; g.done = self.done; g.idx = dict(self.idx); g.uid = self.uid + 1000
        g.hist = {k: list(v) for k, v in self.hist.items()}
        return g
    def __call__(self, s): self.a(s)
    def issue(self, tag, text):
        self.a(text); self.idx[tag] = self.n; self.n += 1
    def wait_idx(self, k):
        if k < self.done: return
        cnt = self.n - 1 - k
        assert 0 <= cnt <= 63, cnt
        self.a("s_waitcnt vmcnt(%d)" % cnt); self.done = k + 1
    def wait(self, tag): self.wait_idx(self.idx[tag])
    def known(self, tag): return tag in self.idx and self.idx[tag] < self.done
    def stamp(self, k):
        if self.P.get("stamps"):
            self.a("s_memrealtime s[%d:%d]" % (s_ST + 2 * k, s_ST + 2 * k + 1))
    def lab(self, s):
        self.uid += 1
        return "%s_%d" % (s, self.uid)
    def rnd(self, d, s):
        self("v_cvt_pk_bf16_f32 v%d, %s, %s" % (d, s, s)); self("v_lshlrev_b32 v%d, 16, v%d" % (d, d))
    def row_red(self, op, v, steps):
        for st in steps:
            self("%s_dpp v%d, v%d, v%d %s %s" % (op, v, v, v, st, DPPALL))
    def rows_to63(self, op, v):
        self("%s_dpp v%d, v%d, v%d row_bcast:15 row_mask:0xa bank_mask:0xf" % (op, v, v, v))
        self("%s_dpp v%d, v%d, v%d row_bcast:31 row_mask:0xc bank_mask:0xf" % (op, v, v, v))
    def wave_sum63(self, v):
        self.row_red("v_add_f32", v, ["row_ror:8", "row_ror:4", "row_ror:2", "row_ror:1"]); self.rows_to63("v_add_f32", v)

def op_text(tag):
    k = tag[0]
    if k == "K":
        i = tag[1]
        return ["s_mov_b32 s%d, 0x%x" % (s_so, i * 8192)], "buffer_load_dwordx4 %s, v2, s[%d:%d], s%d offen nt" % (r4(SL + 4 * i), sK, sK + 3, s_so)
    if k == "V":
        i = tag[1]
        return ["s_mov_b32 s%d, 0x%x" % (s_so, i * 8192)], "buffer_load_dwordx4 %s, v2, s[%d:%d], s%d offen nt" % (r4(SL + 4 * i), sV, sV + 3, s_so)
    if k == "wq":
        i = tag[1]
        return ["s_mov_b32 s%d, 0x%x" % (s_so, i * 8192)], "buffer_load_dwordx4 %s, v3, s[%d:%d], s%d offen" % (r4(WQ + 4 * i), sWQ, sWQ + 3, s_so)
    if k == "wo":
        i = tag[1]; t, cb = i >> 2, i & 3
        return ["s_mov_b32 s%d, 0x%x" % (s_so, t * 4096)], "buffer_load_dwordx4 %s, v4, s[%d:%d], s%d offen offset:%d" % (r4(WQ + 4 * i), sWO, sWO + 3, s_so, cb * 256)
    if k == "w1":
        return [], "buffer_load_dwordx4 %s, v5, s[%d:%d], 0 offen" % (r4(W1), sW1, sW1 + 3)
    if k == "w2":
        return [], "buffer_load_dwordx4 %s, v2, s[%d:%d], 0 offen" % (r4(W2), sW2, sW2 + 3)
    if k == "clrY":
        return ["v_add_u32 v63, s%d, v6" % s_pY], "buffer_store_dword v62, v63, s[%d:%d], 0 offen sc1" % (sY, sY + 3)
    if k == "clrMO":
        return ["v_add_u32 v61, s%d, v6" % s_uoff], "buffer_store_dword v62, v61, s[%d:%d], 0 offen sc1" % (sMO, sMO + 3)
    if k == "cnt":
        return ["v_mov_b32 v7, 0"], "global_load_dword v54, v7, s[26:27] sc1"
    if k == "ml":
        return [], "buffer_load_dwordx2 %s, v13, s[%d:%d], 0 offen offset:2048 sc1" % (r2(52), sY, sY + 3)
    if k == "mo":
        return [], "buffer_load_dwordx4 %s, v12, s[%d:%d], s%d offen sc1" % (r4(48), sMO, sMO + 3, s_d)
    if k == "x8":
        return [], "global_load_ushort v14, v55, s[4:5]"
    if k == "b28":
        return [], "global_load_ushort v15, v55, s[22:23]"
    raise ValueError(tag)

class Task:
    def __init__(self, name, fn, deps=(), cost=8, barrier=False):
        self.name, self.fn, self.deps, self.cost, self.barrier = name, fn, list(deps), cost, barrier

class Sched:
    def __init__(self, g, ops, tasks, depth, needs, budget, pre_barrier):
        self.g, self.ops, self.tasks = g, list(ops), list(tasks)
        self.depth, self.needs, self.budget, self.pre = depth, needs, budget, pre_barrier
        self.oi = 0; self.ti = 0; self.doneT = set()
    def issue_next(self, throttle=True):
        g = self.g; tag = self.ops[self.oi]
        for t in self.needs.get(tag, []):
            self.force(t)
        cls = "s" if tag[0] in ("K", "V") else ("q" if tag[0] in ("wq", "wo") else None)
        if cls is not None:
            hist = g.hist[cls]
            if throttle:
                d = self.depth(tag)
                if len(hist) >= d: g.wait_idx(hist[len(hist) - d])
            hist.append(None)
        pre, txt = op_text(tag)
        for x in pre: g(x)
        g.issue(tag, txt); self.oi += 1
        if cls is not None: g.hist[cls][-1] = g.idx[tag]
        hook = g.P.get("_hook")
        if tag[0] == "clrMO":
            l = g.lab("L_noml")
            g("s_cmp_eq_u32 s%d, 0" % s_w); g("s_cbranch_scc0 %s" % l)
            g("s_mov_b64 exec, 3")
            g("buffer_store_dword v62, v63, s[%d:%d], 0 offen offset:2048 sc1" % (sY, sY + 3))
            g("s_mov_b64 exec, -1")
            g.a.label(l)
    def run_task(self):
        t = self.tasks[self.ti]
        if t.barrier:
            for _ in range(self.pre):
                if self.oi < len(self.ops) and not self.blocked(self.ops[self.oi]):
                    self.issue_next(throttle=False)
        for d in t.deps:
            if d not in self.g.idx:
                while d not in self.g.idx: self.issue_next()
            self.g.wait(d)
        self.ti += 1
        t.fn(self.g); self.doneT.add(t.name)
    def blocked(self, tag):
        return any(x not in self.doneT for x in self.needs.get(tag, []))
    def force(self, name):
        while name not in self.doneT:
            assert self.ti < len(self.tasks), name
            self.run_task()
    def ready(self, t):
        return all(self.g.known(d) for d in t.deps)
    def run(self, until_op=None, drain=True):
        while self.oi < len(self.ops):
            if until_op is not None and self.ops[self.oi][0] == until_op[0] and self.ops[self.oi][1] >= until_op[1]: return
            self.issue_next()
            b = self.budget
            while self.ti < len(self.tasks) and b > 0 and self.ready(self.tasks[self.ti]):
                b -= self.tasks[self.ti].cost
                self.run_task()
        if drain:
            while self.ti < len(self.tasks): self.run_task()

def prologue(g):
    g("s_cmp_ge_u32 s2, 256")
    g("s_cbranch_scc1 L_end")
    g("s_load_dwordx16 s[4:19], s[0:1], 0")
    g("s_load_dwordx8 s[20:27], s[0:1], 64")
    g("s_load_dwordx2 s[28:29], s[0:1], 96")
    g.stamp(0)
    g("v_and_b32 v1, 63, v0")
    g("v_lshlrev_b32 v2, 4, v0")
    g("v_lshlrev_b32 v6, 2, v0")
    g("v_lshlrev_b32 v56, 4, v1")
    g("v_lshlrev_b32 v57, 1, v0")
    g("v_lshrrev_b32 v58, 6, v0")
    g("v_lshrrev_b32 v59, 4, v0")
    g("v_readfirstlane_b32 s%d, v58" % s_w)
    g("v_and_b32 v60, 15, v0")
    g("v_lshlrev_b32 v61, 17, v59")
    g("v_lshl_add_u32 v3, v60, 4, v61")
    g("v_and_b32 v59, 3, v59")
    g("v_lshlrev_b32 v59, 10, v59")
    g("v_lshl_add_u32 v59, v60, 4, v59")
    g("v_lshl_add_u32 v4, v58, 14, v59")
    g("v_mul_u32_u24 v5, 0x%x, v0" % 2752)
    g("v_mov_b32 v62, -1")
    g("s_and_b32 s%d, s2, 7" % s_xcd)
    g("s_lshr_b32 s%d, s2, 3" % s_slot)
    g("s_lshl_b32 s%d, s%d, 2" % (s_head, s_xcd))
    g("s_lshr_b32 s%d, s%d, 3" % (s_a, s_slot))
    g("s_add_u32 s%d, s%d, s%d" % (s_head, s_head, s_a))
    g("s_lshl_b32 s%d, s%d, 5" % (s_p, s_xcd))
    g("s_add_u32 s%d, s%d, s%d" % (s_p, s_p, s_slot))
    g("s_mul_i32 s%d, s%d, 22" % (s_u, s_xcd))
    g("s_add_u32 s%d, s%d, s%d" % (s_u, s_u, s_slot))
    g("s_cmp_lt_u32 s%d, 22" % s_slot)
    g("s_cselect_b32 s%d, 1, 0" % s_valid)
    g("s_cmp_lt_u32 s%d, 172" % s_u)
    g("s_cselect_b32 s%d, s%d, 0" % (s_valid, s_valid))
    g("s_cmp_eq_u32 s%d, 1" % s_valid)
    g("s_cselect_b32 s%d, s%d, 0" % (s_u, s_u))
    g("s_cselect_b32 s%d, 0x2000, 0" % (sW2 + 2))
    g("s_mul_i32 s%d, s%d, %d" % (s_uoff, s_u, REC))
    g("s_cselect_b32 s%d, s%d, 0x7fff0000" % (s_uoff, s_uoff))
    g("s_lshl_b32 s%d, s%d, 4" % (s_a, s_u))
    g("s_sub_u32 s%d, 0x%x, s%d" % (s_b, 512 * 2752, s_a))
    g("s_cmp_eq_u32 s%d, 1" % s_valid)
    g("s_cselect_b32 s%d, s%d, 0" % (sW1 + 2, s_b))
    g("s_lshl_b32 s%d, s%d, 18" % (s_kvoff, s_p))
    g("s_mul_i32 s%d, s%d, %d" % (s_pY, s_p, REC))
    for s in (sK, sV):
        g("s_mov_b32 s%d, 0x40000" % (s + 2))
    g("s_lshl_b32 s%d, s%d, 8" % (s_b, s_head))
    g("s_sub_u32 s%d, 0x400000, s%d" % (sWQ + 2, s_b))
    g("s_mov_b32 s%d, 0x20000" % (sWO + 2))
    g("s_mov_b32 s%d, 0x%x" % (sY + 2, 256 * REC))
    g("s_mov_b32 s%d, 0x%x" % (sMO + 2, 172 * REC))
    for s in (sK, sV, sWQ, sWO, sW1, sW2, sY, sMO):
        g("s_mov_b32 s%d, 0x20000" % (s + 3))
    g("s_lshl_b32 s%d, s%d, 17" % (s_c, s_head))
    g("s_lshl_b32 s%d, s%d, 13" % (s_d, s_u))
    g("s_lshl_b32 s%d, s%d, 3" % (s_so, s_u))
    g("s_add_u32 s%d, s%d, s%d" % (s_so, s_so, s_w))
    g("s_lshr_b32 s%d, s%d, 1" % (s_cnt, s_so))
    g("s_lshl_b32 s%d, s%d, 2" % (s_cnt, s_cnt))
    g("s_mov_b32 s%d, 0x3e0293ee" % s_cs)
    g.a.l[-1] = "    s_mov_b32 s%d, 0x%08x" % (s_cs, f2u(128 ** -0.5 * 1.4426950408889634))
    g("s_waitcnt lgkmcnt(0)")
    def base(s, p, off):
        if off is None:
            g("s_mov_b32 s%d, s%d" % (s, p)); g("s_mov_b32 s%d, s%d" % (s + 1, p + 1))
        elif isinstance(off, int):
            g("s_add_u32 s%d, s%d, 0x%x" % (s, p, off)); g("s_addc_u32 s%d, s%d, 0" % (s + 1, p + 1))
        else:
            g("s_add_u32 s%d, s%d, s%d" % (s, p, off[0])); g("s_addc_u32 s%d, s%d, 0" % (s + 1, p + 1))
    g.issue(("xall",), "global_load_dwordx4 v[224:227], v56, s[4:5]")
    g.issue(("xown",), "global_load_ushort v228, v57, s[4:5]")
    base(sK, 6, (s_kvoff,))
    base(sWQ, 10, (s_b,))
    base(sW1, 16, (s_a,))
    base(sW2, 20, (s_d,))
    base(sY, 28, None)
    base(sMO, 28, MO_OFF)
    base(sV, 8, (s_kvoff,))
    base(sWO, 12, (s_c,))
    g("s_load_dword s%d, s[18:19], s%d" % (s_b1, s_cnt))

import struct
def f2u(x): return struct.unpack("<I", struct.pack("<f", x))[0]

XA, XO, X, TT = 224, 228, 232, 240
def stats(g, first, smean, svar):
    g("v_add_f32 v240, v%d, v%d" % (X, X + 1)); g("v_add_f32 v241, v%d, v%d" % (X + 2, X + 3))
    g("v_add_f32 v242, v%d, v%d" % (X + 4, X + 5)); g("v_add_f32 v243, v%d, v%d" % (X + 6, X + 7))
    g("v_add_f32 v240, v240, v241"); g("v_add_f32 v242, v242, v243"); g("v_add_f32 v240, v240, v242")
    g.wave_sum63(240)
    g("v_mul_f32 v240, 0x3b000000, v240")
    g("v_readlane_b32 s%d, v240, 63" % smean)
def stats2(g, smean, svar):
    for j in range(8): g("v_subrev_f32 v%d, s%d, v%d" % (244 + j, smean, X + j))
    g("v_mul_f32 v240, v244, v244"); g("v_mul_f32 v241, v245, v245")
    for j in range(2, 8, 2):
        g("v_fma_f32 v240, v%d, v%d, v240" % (244 + j, 244 + j)); g("v_fma_f32 v241, v%d, v%d, v241" % (245 + j, 245 + j))
    g("v_add_f32 v240, v240, v241")
    g.wave_sum63(240)
    g("v_mul_f32 v240, 0x3b000000, v240")
    g("v_readlane_b32 s%d, v240, 63" % svar)
def consts(g, smean, svar, vm, vr):
    g.rnd(vm, "s%d" % smean)
    g.rnd(vr, "s%d" % svar)
    g("v_add_f32 v%d, 0x3727c5ac, v%d" % (vr, vr)); g.rnd(vr, "v%d" % vr)
    g("v_sqrt_f32 v%d, v%d" % (vr, vr)); g.rnd(vr, "v%d" % vr)
    g("v_rcp_f32 v%d, v%d" % (vr, vr))

def t_masks(g):
    g("v_and_b32 v56, 15, v0"); g("v_and_b32 v57, 1, v0"); g("v_lshrrev_b32 v56, 1, v56")
    g("v_mov_b32 v58, 0xffff"); g("v_mov_b32 v59, 0xffff0000")
    g("v_cmp_eq_u32 vcc, 1, v57"); g("v_cndmask_b32 v58, v58, v59, vcc")
    for r in range(4):
        g("v_cmp_eq_u32 vcc, %d, v56" % r); g("v_cndmask_b32 v%d, 0, v58, vcc" % M[r])
def t_ln1a(g):
    for j in range(4):
        g("v_lshlrev_b32 v%d, 16, v%d" % (X + 2 * j, XA + j)); g("v_and_b32 v%d, 0xffff0000, v%d" % (X + 2 * j + 1, XA + j))
    stats(g, True, s_a, s_b)
def t_ln1b(g): stats2(g, s_a, s_b)
def t_ln1c(g):
    consts(g, s_a, s_b, 230, 231)
    g("v_lshlrev_b32 v229, 16, v%d" % XO)
    g("v_sub_f32 v229, v229, v230"); g.rnd(229, "v229")
    g("v_mul_f32 v229, v229, v231")
    g("v_cvt_pk_bf16_f32 v%d, v229, v229" % XN)
def t_ln2a(g):
    for j in range(0, 8, 2):
        a, b = X + j, X + j + 1
        g("v_sub_f32 v%d, v%d, v230" % (a, a)); g("v_sub_f32 v%d, v%d, v230" % (b, b))
        g("v_cvt_pk_bf16_f32 v240, v%d, v%d" % (a, b))
        g("v_lshlrev_b32 v%d, 16, v240" % a); g("v_and_b32 v%d, 0xffff0000, v240" % b)
        g("v_mul_f32 v%d, v%d, v231" % (a, a)); g("v_mul_f32 v%d, v%d, v231" % (b, b))
        g("v_cvt_pk_bf16_f32 v240, v%d, v%d" % (a, b))
        g("v_lshlrev_b32 v%d, 16, v240" % a); g("v_and_b32 v%d, 0xffff0000, v240" % b)
def t_ln2b(g): stats(g, False, s_a, s_b)
def t_ln2c(g): stats2(g, s_a, s_b)
def t_ln2d(g):
    consts(g, s_a, s_b, 230, 231)
    g("v_lshlrev_b32 v229, 16, v%d" % XN)
    g("v_sub_f32 v229, v229, v230"); g.rnd(229, "v229")
    g("v_mul_f32 v229, v229, v231"); g.rnd(Y2, "v229")

def sel_mfma(g, a_reg, src, lane, k, acc, first):
    b = BS[k & 1]
    for r in range(4):
        g("v_and_b32_dpp v%d, v%d, v%d row_newbcast:%d %s" % (b + r, src, M[r], lane, DPPALL))
    g("v_mfma_f32_16x16x32_bf16 %s, %s, %s, %s" % (r4(acc), r4(a_reg), r4(b), "0" if first else r4(acc)))

def t_q(i):
    return lambda g: sel_mfma(g, WQ + 4 * i, XN, i, i, (D0, D1)[i & 1], i < 2)

def t_w1(g):
    a = X
    for j in range(4):
        g("v_lshlrev_b32 v%d, 16, v%d" % (a + 2 * j, W1 + j)); g("v_and_b32 v%d, 0xffff0000, v%d" % (a + 2 * j + 1, W1 + j))
    for j in range(8): g("v_mul_f32 v%d, v%d, v%d" % (a + j, a + j, Y2))
    for j in range(4): g("v_permlane32_swap_b32 v%d, v%d" % (a + j, a + j + 4))
    for j in range(4): g("v_add_f32 v%d, v%d, v%d" % (a + j, a + j, a + j + 4))
    g("v_permlane16_swap_b32 v%d, v%d" % (a, a + 2)); g("v_permlane16_swap_b32 v%d, v%d" % (a + 1, a + 3))
    g("v_add_f32 v%d, v%d, v%d" % (a, a, a + 2)); g("v_add_f32 v%d, v%d, v%d" % (a + 1, a + 1, a + 3))
    g("v_add_f32_dpp v240, v%d, v%d row_ror:8 row_mask:0xf bank_mask:0x3" % (a, a))
    g("v_add_f32_dpp v240, v%d, v%d row_ror:8 row_mask:0xf bank_mask:0xc" % (a + 1, a + 1))
    g.row_red("v_add_f32", 240, ["row_half_mirror", "quad_perm:[2,3,0,1]", "quad_perm:[1,0,3,2]"])
    g("v_lshrrev_b32 v241, 3, v1"); g("v_lshlrev_b32 v241, 5, v241")
    g("s_lshl_b32 s%d, s%d, 2" % (s_a, s_w)); g("s_add_u32 s%d, s%d, %d" % (s_a, s_a, L_HP))
    g("v_add_u32 v241, s%d, v241" % s_a)
    g("s_mov_b32 exec_lo, 0x01010101"); g("s_mov_b32 exec_hi, 0x01010101")
    g("ds_write_b32 v241, v240")
    g("s_mov_b64 exec, -1")

def t_qfin(g):
    for r in range(4): g("v_add_f32 v%d, v%d, v%d" % (D0 + r, D0 + r, D1 + r))
    g("v_lshrrev_b32 v56, 4, v1"); g("v_mul_u32_u24 v56, 144, v56")
    g("v_and_b32 v57, 15, v1"); g("v_lshl_add_u32 v56, v57, 2, v56")
    g("s_mul_i32 s%d, s%d, 576" % (s_a, s_w))
    g("v_add_u32 v56, s%d, v56" % s_a)
    g("s_mov_b32 exec_lo, 0x00ff00ff"); g("s_mov_b32 exec_hi, 0x00ff00ff")
    for r in range(4): g("ds_write_b32 v56, v%d offset:%d" % (D0 + r, L_QP + 32 * r))
    g("s_mov_b64 exec, -1")
def t_bar(k=None):
    def f(g):
        g("s_waitcnt lgkmcnt(0)"); g("s_barrier")
        if k is not None: g.stamp(k)
    return f
def t_count(g):
    l = g.lab("L_nocnt")
    g("s_cmp_eq_u32 s%d, 0" % s_w); g("s_cbranch_scc0 %s" % l)
    g("v_mov_b32 v56, 0"); g("v_mov_b32 v57, 1")
    g("s_mov_b64 exec, 1")
    g("global_atomic_add v56, v57, s[26:27] sc1")
    g("s_mov_b64 exec, -1")
    g.a.label(l)
def t_qasm(g):
    g("v_lshrrev_b32 v40, 4, v1"); g("v_mul_u32_u24 v40, 1152, v40")
    g("v_bfe_u32 v41, v1, 2, 2"); g("v_mul_u32_u24 v41, 144, v41")
    g("v_and_b32 v42, 3, v1"); g("v_lshlrev_b32 v42, 5, v42")
    g("v_add3_u32 v40, v40, v41, v42")
    g("ds_read_b128 v[16:19], v40 offset:%d" % (L_QP))
    g("ds_read_b128 v[20:23], v40 offset:%d" % (L_QP + 16))
    g("ds_read_b128 v[56:59], v40 offset:%d" % (L_QP + 576))
    g("ds_read_b128 v[60:63], v40 offset:%d" % (L_QP + 592))
    g("s_lshl_b32 s%d, s%d, 5" % (s_a, s_w)); g("v_mov_b32 v41, s%d" % s_a)
    g("ds_read_b128 v[32:35], v41 offset:%d" % L_HP)
    g("ds_read_b128 v[36:39], v41 offset:%d" % (L_HP + 16))
    g("s_waitcnt lgkmcnt(2)")
    for j in range(8): g("v_add_f32 v%d, v%d, v%d" % (16 + j, 16 + j, 56 + j))
    for j in range(4): g("v_permlane32_swap_b32 v%d, v%d" % (16 + j, 20 + j))
    for j in range(4): g("v_add_f32 v%d, v%d, v%d" % (16 + j, 16 + j, 20 + j))
    g("v_permlane16_swap_b32 v16, v18"); g("v_permlane16_swap_b32 v17, v19")
    g("v_add_f32 v16, v16, v18"); g("v_add_f32 v17, v17, v19")
    g("v_cvt_pk_bf16_f32 v12, v16, v17")
    g("v_mov_b32 v13, v12")
    g("v_permlane16_swap_b32 v12, v13")
    g("v_mov_b32 v14, v12"); g("v_mov_b32 v15, v13")
    g("v_permlane32_swap_b32 v12, v14")
    g("v_permlane32_swap_b32 v13, v15")
def t_h(g):
    g("s_waitcnt lgkmcnt(0)")
    g("v_add_f32 v32, v32, v33"); g("v_add_f32 v34, v34, v35"); g("v_add_f32 v36, v36, v37"); g("v_add_f32 v38, v38, v39")
    g("v_add_f32 v32, v32, v34"); g("v_add_f32 v36, v36, v38"); g("v_add_f32 v32, v32, v36")
    g.rnd(32, "v32")
    g("s_and_b32 s%d, s%d, 1" % (s_a, s_w))
    g("s_lshl_b32 s%d, s%d, 4" % (s_a, s_a))
    g("s_lshr_b32 s%d, s%d, s%d" % (s_a, s_b1, s_a))
    g("s_lshl_b32 s%d, s%d, 16" % (s_a, s_a))
    g("v_add_f32 v32, s%d, v32" % s_a); g.rnd(32, "v32")
    k0 = -2.0 * 0.7978845608028654 * 1.4426950408889634
    g("v_mul_f32 v33, v32, v32")
    g("v_mov_b32 v34, 0x%08x" % f2u(k0))
    g("v_mov_b32 v35, 0x%08x" % f2u(k0 * 0.044715))
    g("v_fma_f32 v33, v33, v35, v34")
    g("v_mul_f32 v33, v33, v32")
    g("v_exp_f32 v33, v33")
    g("v_add_f32 v33, 1.0, v33")
    g("v_rcp_f32 v33, v33")
    g("v_mul_f32 v33, v32, v33"); g.rnd(33, "v33")
def t_w2(g):
    for j in range(4):
        g("v_lshlrev_b32 v%d, 16, v%d" % (32 + 2 * j + 4, W2 + j)); g("v_and_b32 v%d, 0xffff0000, v%d" % (32 + 2 * j + 5, W2 + j))
    for j in range(8): g("v_mul_f32 v%d, v%d, v33" % (36 + j, 36 + j))
    g("v_lshlrev_b32 v34, 5, v0")
    g("ds_write_b128 v34, v[36:39] offset:%d" % L_MOP)
    g("ds_write_b128 v34, v[40:43] offset:%d" % (L_MOP + 16))

def beta(i): return 2 * (i & 1) + ((i >> 1) & 1)
def t_k(i):
    def f(g):
        k = SL + 4 * i; p = P0 + (i & 3)
        g("v_dot2_f32_bf16 v%d, v%d, v%d, 0" % (p, k, Q[0]))
        for r in range(1, 4): g("v_dot2_f32_bf16 v%d, v%d, v%d, v%d" % (p, k + r, Q[r], p))
        if (i & 1) == 1:
            rr = R0 + ((i >> 1) & 1)
            g("v_add_f32_dpp v%d, v%d, v%d row_ror:8 row_mask:0xf bank_mask:0x3" % (rr, p - 1, p - 1))
            g("v_add_f32_dpp v%d, v%d, v%d row_ror:8 row_mask:0xf bank_mask:0xc" % (rr, p, p))
        if (i & 3) == 3:
            s = S0 + (i >> 2)
            g("v_add_f32_dpp v%d, v%d, v%d row_half_mirror row_mask:0xf bank_mask:0x5" % (s, R0, R0))
            g("v_add_f32_dpp v%d, v%d, v%d row_half_mirror row_mask:0xf bank_mask:0xa" % (s, R0 + 1, R0 + 1))
            g.row_red("v_add_f32", s, ["quad_perm:[2,3,0,1]", "quad_perm:[1,0,3,2]"])
    return f
def t_sm1(g):
    g("v_max3_f32 v56, v32, v33, v34"); g("v_max3_f32 v57, v35, v36, v37"); g("v_max_f32 v58, v38, v39")
    g("v_max3_f32 v56, v56, v57, v58")
    g.row_red("v_max_f32", 56, ["row_ror:4", "row_ror:8"]); g.rows_to63("v_max_f32", 56)
    g("v_readlane_b32 s%d, v56, 63" % s_a)
    g("v_mov_b32 v57, s%d" % s_cs)
    g("v_mul_f32 v44, s%d, v57" % s_a)
def t_sm2(g):
    for k in range(8): g("v_fma_f32 v%d, v%d, v57, -v44" % (S0 + k, S0 + k))
    for k in range(8): g("v_exp_f32 v%d, v%d" % (S0 + k, S0 + k))
    g("v_add_f32 v58, v32, v33"); g("v_add_f32 v59, v34, v35"); g("v_add_f32 v60, v36, v37"); g("v_add_f32 v61, v38, v39")
    g("v_add_f32 v58, v58, v59"); g("v_add_f32 v60, v60, v61"); g("v_add_f32 v45, v58, v60")
    for k in range(8): g("v_cvt_pk_bf16_f32 v%d, v%d, v%d" % (S0 + k, S0 + k, S0 + k))
def t_sm3(g):
    g.row_red("v_add_f32", 45, ["row_ror:4", "row_ror:8"]); g.rows_to63("v_add_f32", 45)
    g("s_lshl_b32 s%d, s%d, 3" % (s_a, s_w)); g("v_mov_b32 v56, s%d" % s_a)
    g("s_mov_b32 exec_lo, 0"); g("s_mov_b32 exec_hi, 0x80000000")
    g("ds_write_b64 v56, v[44:45] offset:%d" % L_ML)
    g("s_mov_b64 exec, -1")
def t_ml(g):
    g("v_and_b32 v56, 7, v1"); g("v_lshlrev_b32 v56, 3, v56")
    g("ds_read_b64 v[58:59], v56 offset:%d" % L_ML)
    for w in range(8): pass
    g("s_waitcnt lgkmcnt(0)")
    g("v_mov_b32 v60, v58")
    g.row_red("v_max_f32", 60, ["row_half_mirror", "quad_perm:[2,3,0,1]", "quad_perm:[1,0,3,2]"])
    g("v_sub_f32 v58, v58, v60"); g("v_exp_f32 v58, v58")
    g("v_sub_f32 v%d, v44, v60" % FW); g("v_exp_f32 v%d, v%d" % (FW, FW))
    g("v_mul_f32 v61, v58, v59")
    g.row_red("v_add_f32", 61, ["row_half_mirror", "quad_perm:[2,3,0,1]", "quad_perm:[1,0,3,2]"])
    l = g.lab("L_noml")
    g("s_cmp_eq_u32 s%d, 0" % s_w); g("s_cbranch_scc0 %s" % l)
    g("v_mov_b32 v56, s%d" % s_pY)
    g("s_mov_b64 exec, 1")
    g("buffer_store_dwordx2 v[60:61], v56, s[%d:%d], 0 offen offset:2048 sc1" % (sY, sY + 3))
    g("s_mov_b64 exec, -1")
    g.a.label(l)
def t_mosum(g):
    for w in range(8): g("ds_read_b32 v%d, v6 offset:%d" % (48 + w, L_MOP + 2048 * w))
    g("v_add_u32 v7, s%d, v6" % s_uoff)
    g("s_waitcnt lgkmcnt(0)")
    g("v_add_f32 v48, v48, v49"); g("v_add_f32 v50, v50, v51"); g("v_add_f32 v52, v52, v53"); g("v_add_f32 v54, v54, v55")
    g("v_add_f32 v48, v48, v50"); g("v_add_f32 v52, v52, v54"); g("v_add_f32 v48, v48, v52")
    g.issue(("most",), "buffer_store_dword v48, v7, s[%d:%d], 0 offen sc1" % (sMO, sMO + 3))
def t_v(i):
    return lambda g: sel_mfma(g, SL + 4 * i, S0 + (i >> 2), 4 * beta(i & 3), i, (D0, D1)[i & 1], i < 2)

def tail_wo(g):
    g.stamp(3)
    for r in range(4): g("v_add_f32 v%d, v%d, v%d" % (D0 + r, D0 + r, D1 + r))
    for r in range(4): g("v_mul_f32 v%d, v%d, v%d" % (D0 + r, D0 + r, FW))
    g("s_mov_b32 exec_lo, 0x00ff00ff"); g("s_mov_b32 exec_hi, 0x00ff00ff")
    g("ds_write_b128 v40, %s offset:%d" % (r4(D0), L_OP))
    g("s_mov_b64 exec, -1")
    g("s_waitcnt lgkmcnt(0)"); g("s_barrier")
    g("ds_read_b32 v56, v41 offset:%d" % L_OP)
    g("ds_read_b32 v57, v41 offset:%d" % (L_OP + 4 * OPS * 4))
    g("s_waitcnt lgkmcnt(0)")
    g("v_add_f32 v56, v56, v57")
    g.row_red("v_add_f32", 56, ["row_ror:8", "row_ror:4"])
    g("v_cvt_pk_bf16_f32 v47, v56, v56")
    bsets = [16, 20, 56, 60]
    for t in range(4):
        for r in range(4):
            g("v_and_b32_dpp v%d, v47, v%d row_newbcast:%d %s" % (bsets[t] + r, M[r], t, DPPALL))
    for t in range(4):
        for cb in range(4):
            acc = 24 + 4 * cb
            g("v_mfma_f32_16x16x32_bf16 %s, %s, %s, %s" % (r4(acc), r4(WQ + 4 * (4 * t + cb)), r4(bsets[t]), "0" if t == 0 else r4(acc)))
    g("s_mov_b32 exec_lo, 0x00ff00ff"); g("s_mov_b32 exec_hi, 0x00ff00ff")
    for cb in range(4):
        g("ds_write_b128 v42, %s offset:%d" % (r4(24 + 4 * cb), L_YP + 512 * cb))
    g("s_mov_b64 exec, -1")
    g("s_waitcnt lgkmcnt(0)"); g("s_barrier")
    for w in range(8): g("ds_read_b32 v%d, v43 offset:%d" % (56 + w, L_YP + 2048 * w))
    g("v_add_u32 v7, s%d, v6" % s_pY)
    g("s_waitcnt lgkmcnt(0)")
    g("v_add_f32 v56, v56, v57"); g("v_add_f32 v58, v58, v59"); g("v_add_f32 v60, v60, v61"); g("v_add_f32 v62, v62, v63")
    g("v_add_f32 v56, v56, v58"); g("v_add_f32 v60, v60, v62"); g("v_add_f32 v56, v56, v60")
    g.issue(("yst",), "buffer_store_dword v56, v7, s[%d:%d], 0 offen sc1" % (sY, sY + 3))
    g.stamp(4)
def t_tailaddr(g):
    g("v_lshrrev_b32 v56, 4, v1"); g("v_and_b32 v57, 15, v1")
    g("v_lshlrev_b32 v58, 7, v56"); g("v_lshl_add_u32 v58, v57, 4, v58")
    g("s_mul_i32 s%d, s%d, %d" % (s_a, s_w, OPS * 4))
    g("v_add_u32 v40, s%d, v58" % s_a)
    g("s_lshl_b32 s%d, s%d, 11" % (s_a, s_w))
    g("v_add_u32 v42, s%d, v58" % s_a)
    g("v_lshrrev_b32 v59, 2, v57"); g("v_mul_u32_u24 v59, %d, v59" % (OPS * 4))
    g("v_and_b32 v60, 1, v1"); g("v_lshl_add_u32 v59, v60, 6, v59")
    g("v_lshl_add_u32 v59, v56, 4, v59")
    g("v_bfe_u32 v60, v1, 1, 1"); g("v_lshl_add_u32 v59, v60, 2, v59")
    g("s_lshr_b32 s%d, s%d, 1" % (s_a, s_w)); g("s_lshl_b32 s%d, s%d, 7" % (s_a, s_a))
    g("s_and_b32 s%d, s%d, 1" % (s_b, s_w)); g("s_lshl_b32 s%d, s%d, 3" % (s_b, s_b))
    g("s_add_u32 s%d, s%d, s%d" % (s_a, s_a, s_b))
    g("v_add_u32 v41, s%d, v59" % s_a)
    g("v_and_b32 v59, 0x1e0, v0"); g("v_and_b32 v60, 7, v0"); g("v_lshl_add_u32 v59, v60, 2, v59")
    g("v_bfe_u32 v60, v0, 3, 2"); g("v_add_u32 v59, v59, v60"); g("v_lshlrev_b32 v43, 2, v59")

def quad_reduce(g, a, red_off):
    g("v_permlane32_swap_b32 v%d, v%d" % (a, a + 2)); g("v_permlane32_swap_b32 v%d, v%d" % (a + 1, a + 3))
    g("v_add_f32 v%d, v%d, v%d" % (a, a, a + 2)); g("v_add_f32 v%d, v%d, v%d" % (a + 1, a + 1, a + 3))
    g("v_permlane16_swap_b32 v%d, v%d" % (a, a + 1))
    g("v_add_f32 v%d, v%d, v%d" % (a, a, a + 1))
    g.row_red("v_add_f32", a, ["row_ror:8", "row_ror:4", "row_ror:2"])
    g("s_mov_b32 exec_lo, 0x00030003"); g("s_mov_b32 exec_hi, 0x00030003")
    g("ds_write_b32 v45, v%d offset:%d" % (a, red_off))
    g("s_mov_b64 exec, -1")
def t_redaddr(g):
    g("v_lshrrev_b32 v56, 1, v0"); g("v_mul_u32_u24 v56, %d, v56" % REC)
    g("v_mov_b32 v13, v56")
    g("v_and_b32 v57, 1, v0"); g("v_lshl_add_u32 v12, v57, 4, v56")
    g("s_lshl_b32 s%d, s2, 5" % s_d)
    g("v_and_b32 v55, 7, v1"); g("v_lshlrev_b32 v55, 1, v55")
    g("s_lshl_b32 s%d, s2, 4" % s_a); g("v_add_u32 v55, s%d, v55" % s_a)
    g("v_lshlrev_b32 v57, 7, v57")
    g("v_lshrrev_b32 v56, 4, v1"); g("v_lshl_add_u32 v57, v56, 5, v57")
    g("s_lshl_b32 s%d, s%d, 2" % (s_a, s_w)); g("v_add_u32 v45, s%d, v57" % s_a)
def t_cntcheck(g):
    lo, lp = g.lab("L_cntok"), g.lab("L_cntlp")
    g("v_readfirstlane_b32 s%d, v54" % s_a)
    g("s_cmp_ge_u32 s%d, 256" % s_a); g("s_cbranch_scc1 %s" % lo)
    g("s_mov_b32 s%d, 0" % s_cnt)
    g.a.label(lp)
    g("global_load_dword v54, v7, s[26:27] sc1")
    g("s_waitcnt vmcnt(0)")
    g("v_readfirstlane_b32 s%d, v54" % s_a)
    g("s_add_u32 s%d, s%d, 1" % (s_cnt, s_cnt))
    g("s_cmp_ge_u32 s%d, 256" % s_a); g("s_cbranch_scc1 %s" % lo)
    g("s_cmp_lt_u32 s%d, 0x8000" % s_cnt); g("s_cbranch_scc1 %s" % lp)
    g.a.label(lo)
def poll_check(g, regs, reload_txt):
    lo, lp = g.lab("L_ok"), g.lab("L_lp")
    def chk():
        if len(regs) == 4:
            g("v_max3_u32 v56, v%d, v%d, v%d" % (regs[0], regs[1], regs[2])); g("v_max_u32 v56, v56, v%d" % regs[3])
        elif len(regs) == 6:
            g("v_max3_u32 v56, v%d, v%d, v%d" % (regs[0], regs[1], regs[2])); g("v_max3_u32 v56, v56, v%d, v%d" % (regs[3], regs[4]))
            g("v_max_u32 v56, v56, v%d" % regs[5])
        g("v_cmp_eq_u32 vcc, -1, v56")
        g("s_cmp_eq_u64 vcc, 0")
    chk(); g("s_cbranch_scc1 %s" % lo)
    g("s_mov_b32 s%d, 0" % s_cnt)
    g.a.label(lp)
    for x in reload_txt: g(x)
    g("s_waitcnt vmcnt(0)")
    chk(); g("s_cbranch_scc1 %s" % lo)
    g("s_add_u32 s%d, s%d, 1" % (s_cnt, s_cnt))
    g("s_cmp_lt_u32 s%d, 0x8000" % s_cnt); g("s_cbranch_scc1 %s" % lp)
    g.a.label(lo)
def t_mlmo(g):
    poll_check(g, [48, 49, 50, 51, 52, 53], [op_text(("ml",))[1], op_text(("mo",))[1]])
    g("v_mov_b32 v56, v52")
    g.row_red("v_max_f32", 56, ["row_ror:8", "row_ror:4", "row_ror:2"])
    g("v_sub_f32 v52, v52, v56"); g("v_exp_f32 v52, v52")
    g("v_mul_f32 v57, v52, v53")
    g.row_red("v_add_f32", 57, ["row_ror:8", "row_ror:4", "row_ror:2"])
    g("v_rcp_f32 v57, v57")
    g("v_mul_f32 v13, v52, v57")
def t_mored(g): quad_reduce(g, 48, L_REDM)
def tail_red(g):
    ytxt = "buffer_load_dwordx4 %s, v12, s[%d:%d], s%d offen sc1" % (r4(48), sY, sY + 3, s_d)
    g.issue(("yg",), ytxt)
    g("v_and_b32 v56, 7, v1"); g("v_lshlrev_b32 v44, 5, v56")
    g("ds_read_b128 v[24:27], v44 offset:%d" % L_REDM)
    g("ds_read_b128 v[28:31], v44 offset:%d" % (L_REDM + 16))
    g("s_waitcnt lgkmcnt(0)")
    g("v_add_f32 v24, v24, v25"); g("v_add_f32 v26, v26, v27"); g("v_add_f32 v28, v28, v29"); g("v_add_f32 v30, v30, v31")
    g("v_add_f32 v24, v24, v26"); g("v_add_f32 v28, v28, v30"); g("v_add_f32 v24, v24, v28")
    g.rnd(24, "v24")
    g("v_lshlrev_b32 v15, 16, v15"); g("v_add_f32 v24, v24, v15"); g.rnd(24, "v24")
    g("v_mul_f32 v25, 0x%08x, v24" % f2u(-1.4426950408889634)); g("v_exp_f32 v25, v25")
    g("v_add_f32 v25, 1.0, v25"); g("v_rcp_f32 v25, v25"); g("v_mul_f32 v25, v24, v25"); g.rnd(15, "v25")
    g("v_lshlrev_b32 v14, 16, v14")
    g.wait(("yg",))
    poll_check(g, [48, 49, 50, 51], [ytxt])
    for j in range(4): g("v_mul_f32 v%d, v%d, v13" % (48 + j, 48 + j))
    quad_reduce(g, 48, L_REDY)
    g("s_waitcnt lgkmcnt(0)"); g("s_barrier")
    g("s_cmp_eq_u32 s%d, 0" % s_w); g("s_cbranch_scc0 L_fin")
    g("ds_read_b128 v[24:27], v44 offset:%d" % L_REDY)
    g("ds_read_b128 v[28:31], v44 offset:%d" % (L_REDY + 16))
    g("s_waitcnt lgkmcnt(0)")
    g("v_add_f32 v24, v24, v25"); g("v_add_f32 v26, v26, v27"); g("v_add_f32 v28, v28, v29"); g("v_add_f32 v30, v30, v31")
    g("v_add_f32 v24, v24, v26"); g("v_add_f32 v28, v28, v30"); g("v_add_f32 v24, v24, v28")
    g.rnd(24, "v24")
    g("v_mul_f32 v24, v24, v15"); g.rnd(24, "v24")
    g("v_add_f32 v24, v14, v24")
    g("v_cvt_pk_bf16_f32 v24, v24, v24")
    g("s_mov_b64 exec, 0xff")
    g("global_store_short v55, v24, s[24:25]")
    g("s_mov_b64 exec, -1")

def finish(g):
    g.a.label("L_fin")
    if g.P.get("stamps"):
        g.stamp(5)
        g("s_waitcnt lgkmcnt(0)")
        g("s_cmp_eq_u32 s%d, 0" % s_w); g("s_cbranch_scc0 L_end")
        for k in range(12): g("v_mov_b32 v%d, s%d" % (24 + k, s_ST + k))
        g("s_mul_i32 s%d, s2, 48" % s_a); g("s_add_u32 s%d, s%d, 0x%x" % (s_a, s_a, STAMP_OFF))
        g("v_mov_b32 v1, s%d" % s_a)
        g("s_mov_b64 exec, 1")
        for k in range(3): g("global_store_dwordx4 v1, v[%d:%d], s[28:29] offset:%d" % (24 + 4 * k, 27 + 4 * k, 16 * k))
    g.a.label("L_end")
    g("s_endpgm")

DEF = dict(stamps=False, dk=4, dv=4, d0=4, n0=4, dq=4, budget=40, pre=1, wo="K", branchV=6, cntV=10, mlV=15, order="kq")
def build(**kw):
    P = dict(DEF); P.update(kw)
    g = Gen(P)
    kernel_begin(g.a, NAME)
    prologue(g)
    ops = []
    for i in range(16):
        ops += [("K", i), ("wq", i)] if P["order"] == "kq" else [("wq", i), ("K", i)]
        if i == 0: ops += [("w1",)]
        if i == 1: ops += [("clrY",), ("clrMO",)]
        if i == 2: ops += [("w2",)]
    if P["wo"] == "K":
        for i in range(16): ops += [("K", 16 + i), ("wo", i)]
        for i in range(32): ops += [("V", i)]
    elif P["wo"] == "V":
        for i in range(16): ops += [("K", 16 + i)]
        for i in range(32):
            ops += [("V", i)]
            if i % 2 == 1 and i < 32: ops += [("wo", i // 2)]
    elif P["wo"] == "KV":
        n = 0
        for i in range(16):
            ops += [("K", 16 + i)]
            if i % 2 == 1: ops += [("wo", n)]; n += 1
        for i in range(32):
            ops += [("V", i)]
            if i % 2 == 1 and n < 16: ops += [("wo", n)]; n += 1
    def depth(tag):
        if tag[0] == "V": return P["dv"]
        if tag[0] == "K": return P["d0"] if tag[1] < P["n0"] else P["dk"]
        return P["dq"]
    tasks = [Task("masks", t_masks, cost=16),
             Task("ln1a", t_ln1a, [("xall",)], 30), Task("ln1b", t_ln1b, [], 34),
             Task("ln1c", t_ln1c, [("xown",)], 24)]
    qt = [Task(("q", i), t_q(i), [("wq", i)], 6) for i in range(16)]
    ln2 = [Task("ln2a", t_ln2a, [], 40), Task("ln2b", t_ln2b, [], 24), Task("ln2c", t_ln2c, [], 34), Task("ln2d", t_ln2d, [], 24),
           Task("w1", t_w1, [("w1",)], 45)]
    tasks += [qt[0], qt[1], ln2[0], qt[2], qt[3], ln2[1], qt[4], ln2[2], qt[5], ln2[3], qt[6], ln2[4]] + qt[7:]
    tasks += [Task("qfin", t_qfin, [], 16),
              Task("B1", t_bar(1), [("clrMO",)], 4, barrier=True),
              Task("count", t_count, [], 6),
              Task("qasm", t_qasm, [], 45), Task("h", t_h, [], 35), Task("w2", t_w2, [("w2",)], 22)]
    tasks += [Task(("k", i), t_k(i), [("K", i)], 8 if i & 1 else 5) for i in range(32)]
    tasks += [Task("sm1", t_sm1, [], 22), Task("sm2", t_sm2, [], 36), Task("sm3", t_sm3, [], 16)]
    nv0 = P.get("vbeforeB2", 2)
    tasks += [Task(("v", i), t_v(i), [("V", i)], 6) for i in range(nv0)]
    tasks += [Task("B2", t_bar(2), [], 4, barrier=True), Task("ml", t_ml, [], 30), Task("mosum", t_mosum, [], 22),
              Task("tailaddr", t_tailaddr, [], 30)]
    needs = {("K", 24): ["w1"]}
    for i in range(16): needs[("wo", i)] = [("q", i)]
    for i in range(32): needs[("V", i)] = [("k", i)]
    bV = P["branchV"]
    sch = Sched(g, ops, tasks, depth, needs, P["budget"], P["pre"])
    sch.run(until_op=("V", bV), drain=False)
    sch.force("tailaddr")
    rest_ops = sch.ops[sch.oi:]
    assert sch.ti == len(sch.tasks)
    g("s_cmp_lt_u32 s2, 64"); g("s_cbranch_scc1 L_red")
    g2 = g.clone_into()
    vt = [Task(("v", i), t_v(i), [("V", i)], 6) for i in range(nv0, 32)]
    wodeps = [("wo", i) for i in range(16)]
    s2 = Sched(g, rest_ops, vt + [Task("tail", tail_wo, wodeps, 100)], depth, {}, P["budget"], 0)
    s2.run()
    g("s_branch L_fin")
    g2.a.label("L_red")
    rops = []
    assert ("V", P["cntV"]) in rest_ops and ("V", P["mlV"]) in rest_ops, rest_ops[0]
    for tag in rest_ops:
        if tag == ("V", P["cntV"]): rops.append(("cnt",))
        if tag == ("V", P["mlV"]): rops += [("ml",), ("mo",), ("x8",), ("b28",)]
        rops.append(tag)
    rt = [Task("redaddr", t_redaddr, [], 16)]
    for i in range(nv0, 32):
        rt.append(Task(("v", i), t_v(i), [("V", i)], 6))
        if i == P["cntV"] - 1: rt.append(Task("cntcheck", t_cntcheck, [("cnt",)], 6))
        if i == P["mlV"] - 1:
            rt += [Task("mlmo", t_mlmo, [("ml",), ("mo",)], 30), Task("mored", t_mored, [], 20)]
    rt += [Task("tail", tail_wo, wodeps + [("x8",), ("b28",)], 100), Task("tailred", tail_red, [], 60)]
    s3 = Sched(g2, rops, rt, depth, {("cnt",): ["redaddr"], ("ml",): ["cntcheck"]}, P["budget"], 0)
    s3.run()
    finish(g2)
    lines = g.a.l + g2.a.l
    lines, nn = hazard.fix(lines)
    body = "\n".join(lines) + "\n"
    launch = "; @launch grid=(256,1,1) block=(512,1,1) lds=%d" % LDS_SIZE
    return file_text([launch], body, [kd(NAME, vgpr=256)]), nn

if __name__ == "__main__":
    import json
    out = sys.argv[1]
    kw = {}
    for s in sys.argv[2:]:
        k, v = s.split("=")
        try: v = int(v)
        except ValueError: pass
        kw[k] = v
    txt, nn = build(**kw)
    open(out, "w").write(txt)
    print(out, len(txt), "bytes; nop states inserted:", nn)
```

```python
import re

def parse_regs(tok):
    tok = tok.strip()
    neg = tok.lstrip('-').strip('|')
    tok = neg
    m = re.fullmatch(r'([vsa])\[(\d+):(\d+)\]', tok)
    if m:
        return {(m.group(1), i) for i in range(int(m.group(2)), int(m.group(3)) + 1)}
    m = re.fullmatch(r'([vsa])(\d+)', tok)
    if m:
        return {(m.group(1), int(m.group(2)))}
    if tok == 'vcc': return {('s', 106), ('s', 107)}
    if tok == 'vcc_lo': return {('s', 106)}
    if tok == 'vcc_hi': return {('s', 107)}
    if tok == 'exec': return {('s', 126), ('s', 127)}
    if tok == 'm0': return {('s', 124)}
    return set()

TRANS = ('v_exp_f32', 'v_log_f32', 'v_rcp_f32', 'v_rsq_f32', 'v_sqrt_f32', 'v_sin_f32', 'v_cos_f32')

class I:
    def __init__(self, text):
        self.text = text
        t = text.split(';')[0].strip()
        self.label = t.endswith(':')
        self.empty = (t == '')
        self.op = ''
        self.w = set(); self.r = set()
        self.states = 0 if (self.label or self.empty or t.startswith('.')) else 1
        self.kind = 'other'
        self.dpp = False; self.srcC = set(); self.srcAB = set(); self.storedata = set(); self.lanesel = set()
        self.target = None
        if self.label or self.empty or t.startswith('.'):
            return
        parts = t.split(None, 1)
        op = parts[0]; self.op = op
        rest = parts[1] if len(parts) > 1 else ''
        ops = [o.strip() for o in rest.split(',')] if rest else []
        mods = ''
        if ops:
            last = ops[-1].split(None, 1)
            ops[-1] = last[0]
            if len(last) > 1: mods = last[1]
        self.mods = mods
        R = [parse_regs(o) for o in ops]
        if op == 's_nop':
            self.states = int(ops[0], 0) + 1; self.kind = 'nop'; return
        if op.startswith('s_cbranch') or op == 's_branch':
            self.kind = 'branch'; self.target = ops[0]; return
        if op.startswith('v_mfma'):
            self.kind = 'mfma'
            self.w = R[0]; self.srcAB = R[1] | R[2]; self.srcC = R[3]; self.r = self.srcAB | self.srcC
            assert '16x16x32' in op
            return
        if op.startswith('v_'):
            self.kind = 'valu'
            self.dpp = ('_dpp' in op) or ('row_' in mods) or ('quad_perm' in mods)
            base = op.replace('_dpp', '').replace('_e32', '').replace('_e64', '')
            self.base = base
            if base.startswith('v_permlane') and 'swap' in base:
                self.w = R[0] | R[1]; self.r = R[0] | R[1]; self.perm = True; return
            if base.startswith('v_cmp'):
                self.w = R[0]
                for x in R[1:]: self.r |= x
                return
            if base in ('v_readlane_b32',):
                self.w = R[0]; self.r = R[1] | R[2]; self.lanesel = R[2]; return
            if base in ('v_readfirstlane_b32',):
                self.w = R[0]; self.r = R[1]; return
            self.w = R[0]
            for x in R[1:]: self.r |= x
            if base in ('v_cndmask_b32',) and len(ops) == 3:
                self.r |= parse_regs('vcc')
            if base.startswith('v_fmac') or base.startswith('v_dot2c') or base.startswith('v_mac') or self.dpp:
                self.r |= R[0]
            if base.startswith('v_dot2'):
                self.dot = True
                self.srcC = R[3] if len(R) > 3 else R[0]
                self.srcAB = R[1] | R[2]
            return
        if op.startswith('ds_'):
            self.kind = 'ds'
            if 'read' in op:
                self.w = R[0]
                for x in R[1:]: self.r |= x
            else:
                for x in R: self.r |= x
                if 'b128' in op or 'b96' in op: self.storedata = R[1]
            return
        if op.startswith('buffer_') or op.startswith('global_'):
            self.kind = 'vmem'
            if 'load' in op or ('atomic' in op and 'sc0' in mods):
                self.w = R[0]
                for x in R[1:]: self.r |= x
            else:
                for x in R: self.r |= x
                if 'x4' in op or 'x3' in op:
                    self.storedata = R[0] if op.startswith('buffer_') else R[1]
            return
        if op.startswith('s_'):
            self.kind = 'salu'
            if op.startswith('s_cmp') or op in ('s_waitcnt', 's_barrier', 's_endpgm', 's_setprio', 's_sleep'):
                for x in R: self.r |= x
            else:
                if R: self.w = R[0]
                for x in R[1:]: self.r |= x
            return
        raise ValueError(text)

def V(s): return {x for x in s if x[0] in 'va'}
def S(s): return {x for x in s if x[0] == 's'}

def need(prod, cons):
    n = 0
    pk, ck = prod.kind, cons.kind
    if pk == 'valu':
        wv = V(prod.w); ws = S(prod.w)
        isdot = getattr(prod, 'dot', False)
        if ck == 'valu':
            if wv & (V(cons.r) | (V(cons.w) if isdot else set())):
                if isdot:
                    if getattr(cons, 'dot', False) and cons.base == prod.base and not (wv & cons.srcAB):
                        pass
                    else:
                        n = max(n, 3)
                if wv & V(cons.r):
                    if cons.dpp: n = max(n, 2)
                    if getattr(cons, 'perm', False): n = max(n, 2)
                    if cons.base in ('v_readlane_b32', 'v_readfirstlane_b32'): n = max(n, 1)
                    if prod.base in TRANS: n = max(n, 1)
            if ws & S(cons.r):
                if ws & cons.lanesel: n = max(n, 4)
                else: n = max(n, 2)
            if ('s', 126) in ws:
                n = max(n, 5)
        if ck == 'mfma':
            if wv & cons.r: n = max(n, 3 if isdot else 2)
            if isdot and (wv & cons.w): n = max(n, 3)
        if ck in ('vmem', 'ds'):
            if ws & S(cons.r): n = max(n, 5)
            if isdot and (wv & (cons.r | cons.w)): n = max(n, 3)
            if prod.base in TRANS and (wv & cons.r): n = max(n, 1)
    if pk == 'mfma':
        if ck == 'mfma':
            if prod.w & cons.srcAB: n = max(n, 8)
            if prod.w & cons.srcC and prod.w != cons.srcC: n = max(n, 6)
            if prod.w & cons.w and prod.w != cons.srcC: n = max(n, 8)
        if ck == 'valu':
            if prod.w & (cons.r | cons.w): n = max(n, 8)
            if prod.srcC & cons.w: n = max(n, 3)
        if ck in ('vmem', 'ds'):
            if prod.w & (cons.r | cons.w): n = max(n, 8)
    if pk in ('vmem', 'ds') and prod.storedata:
        if ck == 'valu' and (prod.storedata & cons.w): n = max(n, 2)
        elif ck in ('vmem', 'ds', 'mfma') and (prod.storedata & cons.w): n = max(n, 1 if ck != 'mfma' else 2)
    if pk == 'salu' and ('s', 126) in prod.w:
        if ck == 'valu' and (cons.dpp or getattr(cons, 'perm', False)): n = max(n, 2)
        if ck == 'mfma': n = max(n, 2)
    return n

WIN = 12
def required(hist, cons):
    dist = 0; add = 0
    for p in reversed(hist):
        if dist >= 9: break
        if p.states and p.kind != 'nop':
            k = need(p, cons)
            if k > dist: add = max(add, k - dist)
        dist += p.states
    return add

def fix(lines):
    ins = [I(x) for x in lines]
    changed = True
    total = 0
    while changed:
        changed = False
        out = []
        for c in ins:
            if c.states and c.kind != 'nop':
                k = required(out[-40:], c)
                if k > 0:
                    out.append(I("    s_nop %d" % (k - 1))); changed = True; total += k
            out.append(c)
        ins = out
        if changed: continue
        labels = {c.text.strip()[:-1].split(';')[0]: i for i, c in enumerate(ins) if c.label}
        for bi, b in enumerate(ins):
            if b.kind == 'branch' and b.target in labels:
                hist = [x for x in ins[max(0, bi - 40):bi + 1]]
                ti = labels[b.target]
                h = list(hist); j = ti + 1; st = 0
                while j < len(ins) and st < 10:
                    c = ins[j]
                    if c.states and c.kind != 'nop':
                        k = required(h, c)
                        if k > 0:
                            ins.insert(j, I("    s_nop %d" % (k - 1))); changed = True; total += k
                            break
                    h.append(c); st += c.states
                    if c.kind == 'branch' and c.op == 's_branch': break
                    j += 1
                if changed: break
    return [c.text for c in ins], total
```

```python
import sys, gen_main
HDR = open("recurrent_scan__gqa_block_cached__mixer_channel_mlp__decode.s.ref").read().split("; @launch")[0]
def make(out, **kw):
    txt, nn = gen_main.build(**kw)
    body = txt[txt.index("; @launch"):]
    open(out, "w").write(HDR + body)
    return nn
if __name__ == "__main__":
    kw = {}
    for s in sys.argv[2:]:
        k, v = s.split("=")
        try: v = int(v)
        except ValueError: pass
        kw[k] = v
    print(sys.argv[1], make(sys.argv[1], **kw))
```
